```python
import torch

def _softmax(x, axis=-1):
    return torch.softmax(x, dim=axis)
def _gelu(x):
    return torch.nn.functional.gelu(x, approximate="tanh")
def _silu(x):
    return torch.nn.functional.silu(x)
def _sigmoid(x):
    return torch.sigmoid(x)
def _layernorm(x, axis=-1, eps=1e-5):
    m = x.mean(dim=axis, keepdim=True)
    v = x.var(dim=axis, keepdim=True, unbiased=False)
    return (x - m) / torch.sqrt(v + eps)
def _scatter_add(tgt, idx, src, axis=0):
    return tgt.clone().index_add_(axis, idx, src)
def _segment_sum(src, seg, n):
    out = torch.zeros((n,) + src.shape[1:], dtype=src.dtype)
    return out.index_add_(0, seg, src)
def _pad(x, pw):
    flat = tuple(v for pair in reversed(pw) for v in pair)
    return torch.nn.functional.pad(x, flat)

kernel_name = 'interleave_layers__linear_attn_block__mixer_token_mlp__prompt'

def setup_inputs():

    _w = (lambda a: (lambda t: t.to(torch.bfloat16) if t.is_floating_point() else t)(torch.as_tensor(a)))
    def _A_setup():
        B, S, D = 1, 2048, 448
        return {
            "x": _w((lambda *s: torch.randn(*s, dtype=torch.bfloat16) * 0.05)(B, S, D)),
            "wqkv": _w((lambda *s: torch.randn(*s, dtype=torch.bfloat16) * 0.1)(D, 3 * D)),
            "wo": _w((lambda *s: torch.randn(*s, dtype=torch.bfloat16) * 0.05)(D, D)),
        }
    _A_in = _A_setup()

    def _B_setup():
        B, S, D, F = 1, 2048, 448, 1792
        return {
            "x": _w((lambda *s: torch.randn(*s, dtype=torch.bfloat16) * 0.05)(B, S, D)),
            "w1": _w((lambda *s: torch.randn(*s, dtype=torch.bfloat16) * 0.8)(S, F) * (S ** -0.5)),
            "b1": _w((lambda *s: torch.randn(*s, dtype=torch.bfloat16) * 12.8)(F) * 0.02),
            "w2": _w((lambda *s: torch.randn(*s, dtype=torch.bfloat16) * 0.4)(F, S) * (F ** -0.5)),
            "b2": _w((lambda *s: torch.randn(*s, dtype=torch.bfloat16) * 6.4)(S) * 0.02),
        }
    _B_in = _B_setup()

    return {
        "A_x": _A_in["x"],
        "A_wqkv": _A_in["wqkv"],
        "A_wo": _A_in["wo"],
        "B_x": _B_in["x"],
        "B_w1": _B_in["w1"],
        "B_b1": _B_in["b1"],
        "B_w2": _B_in["w2"],
        "B_b2": _B_in["b2"],
    }

def reference(A_x, A_wqkv, A_wo, B_x, B_w1, B_b1, B_w2, B_b2):
    def _A_ref(x, wqkv, wo):
        B, S, D = x.shape
        H = 16; Dh = D // H
        qkv = (lambda x, *d: x.permute(*d))((x @ wqkv).reshape(B, S, 3, H, Dh), 2, 0, 3, 1, 4)
        q, k, v = qkv[0], qkv[1], qkv[2]
        phi = lambda t: torch.where(t > 0, t + 1, torch.exp(t)) + 1e-6
        pq, pk = phi(q), phi(k)
        kv = torch.einsum("bhsd,bhse->bhde", pk, v)
        z = torch.einsum("bhsd->bhd", pk)
        num = torch.einsum("bhqd,bhde->bhqe", pq, kv)
        den = torch.einsum("bhqd,bhd->bhq", pq, z)[..., None] + 1e-6
        o = num / den
        return (lambda x, *d: x.permute(*d))(o, 0, 2, 1, 3).reshape(B, S, D) @ wo

    def _B_ref(x, w1, b1, w2, b2):
        B, S, D = x.shape
        h = _layernorm(x, axis=-1)
        u = torch.einsum("bsd,sf->bdf", h, w1) + b1
        u = _gelu(u)
        y = torch.einsum("bdf,fs->bds", u, w2) + b2
        return (lambda x, *d: x.permute(*d))(y, 0, 2, 1)

    x = A_x
    x = x + _A_ref(_layernorm(x, axis=-1), A_wqkv, A_wo)
    x = x + _B_ref(_layernorm(x, axis=-1), B_w1, B_b1, B_w2, B_b2)
    x = x + _A_ref(_layernorm(x, axis=-1), A_wqkv, A_wo)
    x = x + _B_ref(_layernorm(x, axis=-1), B_w1, B_b1, B_w2, B_b2)
    return x
```

```python
import re

REG_RE = re.compile(r'\b([vas])(\d+)\b|\b([vas])\[(\d+):(\d+)\]|\b(vcc|exec|m0|scc)\b|\b(vcc_lo|vcc_hi|exec_lo|exec_hi)\b')

def regs_of(tok):
    out = set()
    for m in REG_RE.finditer(tok):
        if m.group(1): out.add((m.group(1), int(m.group(2))))
        elif m.group(3):
            for i in range(int(m.group(4)), int(m.group(5)) + 1): out.add((m.group(3), i))
        elif m.group(6): out.add((m.group(6), 0))
        elif m.group(7): out.add((m.group(7)[:-3], 0))
    return out

def split_ops(s):
    ops = []; depth = 0; cur = ''
    for ch in s:
        if ch == '[': depth += 1
        if ch == ']': depth -= 1
        if ch == ',' and depth == 0: ops.append(cur.strip()); cur = ''
        else: cur += ch
    if cur.strip(): ops.append(cur.strip())
    return ops

TRANS = ('v_exp_f32', 'v_log_f32', 'v_rcp_f32', 'v_rsq_f32', 'v_sqrt_f32', 'v_sin_f32', 'v_cos_f32')

class Ins:
    __slots__ = ('text', 'mn', 'cls', 'dst', 'src', 'passes', 'srcC', 'srcAB', 'wide_store', 'ldsdma', 'states')
    def __init__(self, text):
        self.text = text
        t = text.split(';')[0].strip()
        parts = t.split(None, 1)
        self.mn = mn = parts[0]
        rest = parts[1] if len(parts) > 1 else ''
        ops = split_ops(rest)
        if ops:
            last = ops[-1].split()
            mods = last[1:]; ops[-1] = last[0]
        else: mods = []
        self.dst = set(); self.src = set(); self.passes = 0; self.srcC = set(); self.srcAB = set()
        self.wide_store = set(); self.ldsdma = False; self.states = 1
        R = [regs_of(o) for o in ops]
        allr = set().union(*R) if R else set()
        if mn == 's_nop':
            self.cls = 'nop'; self.states = int(ops[0], 0) + 1
        elif mn.startswith('v_mfma'):
            self.cls = 'mfma'; self.dst = R[0]; self.srcAB = R[1] | R[2]; self.srcC = R[3]; self.src = self.srcAB | self.srcC
            self.passes = 8 if '32x32' in mn else 4
        elif mn.startswith('v_'):
            self.cls = 'valu'
            if mn.startswith('v_cmp'):
                self.dst = R[0]; self.src = set().union(*R[1:])
            elif mn.startswith('v_permlane') and 'swap' in mn:
                self.dst = R[0] | R[1]; self.src = R[0] | R[1]
            elif mn.startswith(('v_add_co', 'v_sub_co', 'v_addc_co', 'v_subb_co')):
                self.dst = R[0] | R[1]; self.src = set().union(*R[2:])
            else:
                self.dst = R[0]; self.src = set().union(*R[1:]) if len(R) > 1 else set()
                if mn.startswith(('v_fmac', 'v_dot2c', 'v_pk_fmac', 'v_writelane')): self.src |= R[0]
        elif mn.startswith(('buffer_', 'global_')):
            self.cls = 'vmem'
            if 'lds' in mods or '_lds_' in mn:
                self.ldsdma = True; self.src = allr | {('m0', 0)}
            elif '_store' in mn:
                self.src = allr
                if 'x4' in mn or 'x3' in mn:
                    self.wide_store = R[0] if mn.startswith('buffer_') else R[1]
            elif '_atomic' in mn:
                self.src = allr
                if 'sc0' in mods: self.dst = R[0]
            else:
                self.dst = R[0]; self.src = set().union(*R[1:])
        elif mn.startswith('ds_'):
            self.cls = 'ds'
            if 'read' in mn or 'rtn' in mn or 'permute' in mn or 'swizzle' in mn:
                self.dst = R[0]; self.src = set().union(*R[1:])
            else: self.src = allr
        elif mn.startswith('s_'):
            self.cls = 'salu'
            if mn.startswith(('s_cmp', 's_cbranch', 's_branch', 's_waitcnt', 's_barrier', 's_sleep', 's_setprio', 's_endpgm', 's_bitcmp')):
                self.src = allr
            else:
                self.dst = R[0] if R else set(); self.src = set().union(*R[1:]) if len(R) > 1 else set()
        else:
            raise ValueError('unknown instr: ' + text)

def need(p, c):
    n = 0
    isv = lambda s: {r for r in s if r[0] in 'va' and len(r[0]) == 1}
    iss = lambda s: {r for r in s if r[0] in ('s', 'vcc')}
    if p.cls == 'valu':
        wv = isv(p.dst); ws = iss(p.dst)
        if c.cls == 'mfma' and wv & c.src: n = max(n, 2)
        if c.cls == 'valu':
            if wv & c.src:
                if p.mn.startswith(TRANS) and not c.mn.startswith(TRANS): n = max(n, 1)
                if c.mn.startswith(('v_readfirstlane', 'v_readlane')): n = max(n, 1)
                if c.mn.startswith('v_permlane') or 'dpp' in c.text: n = max(n, 2)
                if 'sdwa' in p.mn or 'op_sel:' in p.text: n = max(n, 1)
            if p.mn.startswith('v_dot') and (wv & (c.src | c.dst)) and (c.mn != p.mn): n = max(n, 3)
            if ws & c.src: n = max(n, 4 if c.mn.startswith(('v_readlane', 'v_writelane')) else 2)
            if ('vcc', 0) in ws and c.mn.startswith(('v_cndmask', 'v_addc', 'v_subb')): n = max(n, 2)
        if p.mn.startswith('v_dot') and c.cls in ('vmem', 'ds', 'mfma') and wv & c.src: n = max(n, 3)
        if c.cls == 'vmem' and ws & c.src: n = max(n, 5)
        if c.cls == 'salu' and ws & c.src: n = max(n, 1)
    if p.cls == 'mfma':
        big = p.passes == 8
        if c.cls == 'mfma':
            if p.dst & c.srcAB: n = max(n, 12 if big else 8)
            if p.dst & c.srcC and not (p.dst == c.srcC and p.passes == c.passes): n = max(n, 10 if big else 6)
            if p.dst & c.dst and not (p.dst == c.dst and p.dst == c.srcC): n = max(n, 12 if big else 8)
        elif c.cls in ('valu', 'vmem', 'ds'):
            if p.dst & (c.src | c.dst): n = max(n, 12 if big else 8)
            if c.cls == 'valu' and p.srcC & c.dst: n = max(n, 7 if big else 3)
    if p.cls == 'salu' and ('m0', 0) in p.dst and c.ldsdma: n = max(n, 1)
    if p.wide_store and (p.wide_store & c.dst): n = max(n, 2)
    return n

def hazard_pass(lines, window=24):
    out = []; hist = []
    ninserted = 0
    for ln in lines:
        t = ln.strip()
        if not t or t.startswith((';', '.')) or t.endswith(':'):
            out.append(ln); continue
        ins = Ins(t)
        req = 0
        for (p, dist) in hist:
            k = need(p, ins)
            if k > dist: req = max(req, k - dist)
        if req > 0:
            ninserted += 1
            r = req
            while r > 0:
                m = min(r, 16); out.append(f'    s_nop {m-1}'); r -= m
            hist = [[p, d + req] for p, d in hist]
        out.append(ln)
        hist = [[p, d + ins.states] for p, d in hist if d + ins.states < window]
        hist.append([ins, 0])
    return out, ninserted

class Asm:
    def __init__(self, name):
        self.name = name; self.L = []; self._n = 0
        self.vm = []
        self.lg = []
    def __call__(self, s):
        for l in s.strip('\n').split('\n'):
            l = l.strip()
            if l: self.L.append('    ' + l)
    def label(self, n): self.L.append(n + ':')
    def nl(self, p='L'):
        self._n += 1; return f'{p}{self._n}'
    def comment(self, s): self.L.append('    ; ' + s)
    def vmem(self, s, tag=None):
        self(s); self.vm.append(tag)
    def wait_vm(self, tag=None):
        if tag is None: n = 0
        else:
            idx = [i for i, t in enumerate(self.vm) if t == tag]
            if not idx: return
            n = len(self.vm) - 1 - idx[-1]
        n = min(n, 63)
        self(f's_waitcnt vmcnt({n})')
        self.vm = self.vm[len(self.vm) - n:] if n else []
    def lds(self, s, tag=None):
        self(s); self.lg.append(tag)
    def wait_lg(self, tag=None):
        if tag is None: n = 0
        else:
            idx = [i for i, t in enumerate(self.lg) if t == tag]
            if not idx: return
            n = len(self.lg) - 1 - idx[-1]
        n = min(n, 15)
        self(f's_waitcnt lgkmcnt({n})')
        self.lg = self.lg[len(self.lg) - n:] if n else []
    def finish(self):
        out, n = hazard_pass(self.L)
        return out, n

def vr(a, n=1, p='v'):
    return f'{p}{a}' if n == 1 else f'{p}[{a}:{a+n-1}]'
def ar(a, n=1): return vr(a, n, 'a')
def sr(a, n=1): return vr(a, n, 's')
```

```python
import sys, struct
sys.path.insert(0, 'work')
from asmlib import *

NAME = 'interleave_layers__linear_attn_block__mixer_token_mlp__prompt'
KB = 1024; MB = 1 << 20
PART = 0;            PART_SZ = 1 * MB
O_   = 2 * MB;       O_SZ = 2 * MB
HT   = 6 * MB;       HT_SZ = 0x1C0000
U_   = HT + 2 * HT_SZ; U_SZ = 0x188000
X2   = U_ + 2 * U_SZ;  X2_SZ = 0x1C0000
ST   = X2 + X2_SZ;   ST_SZ = 64 * 14 * 256
SX   = ST + 2 * ST_SZ
WS_END = SX + ST_SZ
assert WS_END <= 15 * MB
STAMP = 32 * MB
LA = 0; LB = 86016; LC = LB + 65536
L_STAT = LC
L_KVF = LC + 2048
L_TRN = LC + 4096
L_RED = LA
sX, sWQKV, sWO, sW1, sW2, sWS, sOUT, sB1, sB2, sDBG, sXC = 8, 12, 16, 20, 24, 28, 32, 36, 40, 44, 48
s_w, s_t, s_h, s_tt, s_ct, s_dt, s_ft, s_pass, s_retry = 52, 53, 54, 55, 56, 57, 58, 59, 60
s_stg = 61
s_cmask = 62
s_xbase, s_xstep = 64, 65
s_log2e = 66
s_c0, s_c1 = 68, 70
s_a, s_b, s_c, s_d = 72, 73, 74, 75
s_tmp2 = 76
s_p2act, s_p3act = 78, 79
s_tbo = 80
s_cbo = 81
s_e, s_f = 82, 83
s_one = 84
s_pofs = 86
vL, vL16, vTR, vTRO, vDMA, vM28, vONE28, vMLO = 0, 1, 2, 3, 4, 5, 6, 7
vWA0, vWA1, vWQ0, vWQ1, vXOFF, vCSK, vCSV, vB2 = 8, 9, 10, 11, 12, 13, 14, 15
vCSQ = 16; vRES = 32; vPQ = 48
vCE2 = 56
vCE = 58
vT0, vT1, vT2, vT3 = 60, 61, 62, 63
ACC = 64; STR = 128
RETRY_MAX = 200000
LOG2E = 1.4426950408889634
def f2u(x): return struct.unpack('<I', struct.pack('<f', x))[0]
def hx(x): return hex(x & 0xffffffff)

class G(Asm):
    def __init__(self, stamps=False):
        super().__init__(NAME + '_kernel'); self.stubs = []; self.stamps = stamps; self.nst = 0
    def srd(self, s): return f's[{s}:{s+3}]'
    def stamp(self, idx):
        if not self.stamps: return
        assert not self.lg
        self(f'''s_memrealtime s[86:87]
        s_waitcnt lgkmcnt(0)
        s_and_b32 s86, s86, 0xffff
        s_lshl_b32 s87, s{s_pass}, 4
        s_lshl_b32 s86, s86, s87
        s_or_b32 s{88+idx}, s{88+idx}, s86''')
    def maxred(self, regs, dst):
        regs = list(regs)
        self(f'v_max3_u32 v{dst}, v{regs[0]}, v{regs[1]}, v{regs[2]}'); i = 3
        while i < len(regs):
            if i + 1 < len(regs): self(f'v_max3_u32 v{dst}, v{dst}, v{regs[i]}, v{regs[i+1]}'); i += 2
            else: self(f'v_max_u32 v{dst}, v{dst}, v{regs[i]}'); i += 1
    def check(self, regs, reload_fn, mask='exec', tmp=vT3):
        lc, lr, ld = self.nl('CK'), self.nl('RT'), self.nl('CD')
        self.label(lc)
        self.maxred(regs, tmp)
        self(f'v_cmp_eq_u32 vcc, -1, v{tmp}')
        self(f's_and_b64 s[{s_tmp2}:{s_tmp2+1}], vcc, {mask}')
        self(f's_cbranch_scc1 {lr}')
        self.label(ld)
        st = Asm('stub'); st.label(lr)
        st(f'''s_nop 7
        s_add_u32 s{s_retry}, s{s_retry}, 1
        s_cmp_gt_u32 s{s_retry}, {RETRY_MAX}
        s_cbranch_scc1 {ld}
        s_waitcnt vmcnt(0)''')
        reload_fn(st)
        st(f's_waitcnt vmcnt(0)\n s_branch {lc}')
        self.stubs += st.L
    def probe(self, voff, soff, dst=vT3):
        lp, ld = self.nl('PB'), self.nl('PD')
        self.label(lp)
        self(f'''buffer_load_dword v{dst}, v{voff}, {self.srd(sWS)}, s{soff} offen sc1
        s_waitcnt vmcnt(0)
        v_cmp_eq_u32 vcc, -1, v{dst}
        s_and_b64 s[{s_tmp2}:{s_tmp2+1}], vcc, exec
        s_cbranch_scc0 {ld}
        s_add_u32 s{s_retry}, s{s_retry}, 1
        s_cmp_gt_u32 s{s_retry}, {RETRY_MAX}
        s_cbranch_scc0 {lp}''')
        self.label(ld); self.vm = []
    def passofs(self, dst, base, size):
        self(f's_mul_i32 s{dst}, s{s_pass}, {size}\n s_add_u32 s{dst}, s{dst}, {base}')
    def dma_voff(self, pitch):
        self(f'''v_bfe_u32 v{vDMA}, v{vL}, 2, 3
        v_mul_u32_u24 v{vDMA}, {pitch}, v{vDMA}
        v_lshrrev_b32 v{vT0}, 5, v{vL}
        v_lshl_add_u32 v{vDMA}, v{vT0}, 6, v{vDMA}
        v_and_b32 v{vT0}, 3, v{vL}
        v_lshl_add_u32 v{vDMA}, v{vT0}, 4, v{vDMA}''')
    def wdma(self, srd, sbase, pitch, blk0, nblk, ldsoff, tag):
        for b in range(nblk):
            self(f's_add_u32 m0, s{s_stg}, {ldsoff + b*1024}')
            self(f's_add_u32 s{s_a}, s{sbase}, {(blk0+b)*8*pitch}')
            self.vmem(f'buffer_load_dwordx4 v{vDMA}, {self.srd(srd)}, s{s_a} offen lds', tag)
    def reduce4(self, tiles):
        lend = self.nl('RE')
        labs = [self.nl('RW') for _ in range(4)]
        for w in range(1, 4):
            self(f's_cmp_eq_u32 s{s_w}, {w}\n s_cbranch_scc1 {labs[w]}')
        for w in range(4):
            self.label(labs[w])
            self('s_nop 15')
            for o in range(4):
                if o == w: continue
                idx = (w - o - 1) & 3
                for q in range(4):
                    self(f'ds_write_b128 v{vL16}, {vr(tiles[o]+4*q,4)} offset:{L_RED + o*12288 + idx*4096 + q*1024}')
            if tiles[w] != ACC:
                self('s_waitcnt lgkmcnt(0)')
                for r in range(0, 16, 2):
                    self(f'v_pk_mul_f32 {vr(ACC+r,2)}, {vr(tiles[w]+r,2)}, s[{s_one}:{s_one+1}]')
            if w < 3: self(f's_branch {lend}')
        self.label(lend)
        self('s_waitcnt lgkmcnt(0)\n s_barrier')
        self(f's_mul_i32 s{s_a}, s{s_w}, 12288\n v_add_u32 v{vT0}, s{s_a}, v{vL16}')
        T = STR
        for i in range(12):
            self.lds(f'ds_read_b128 {vr(T+4*i,4)}, v{vT0} offset:{L_RED + i*1024}', i)
        for idx in range(3):
            self.wait_lg(idx*4+3)
            for r in range(0, 16, 2):
                self(f'v_pk_add_f32 {vr(ACC+r,2)}, {vr(ACC+r,2)}, {vr(T+16*idx+r,2)}')

vSTAMP = 254

def gen(stamps=False):
    g = G(stamps)
    e = g
    e(f'''s_cmp_ge_u32 s2, 256
    s_cbranch_scc1 L_end
    s_load_dwordx16 s[80:95], s[0:1], 0
    s_load_dwordx4 s[96:99], s[0:1], 64
    s_load_dwordx2 s[100:101], s[0:1], 80
    v_lshrrev_b32 v{vT0}, 6, v0
    v_and_b32 v{vL}, 63, v0
    v_readfirstlane_b32 s{s_w}, v{vT0}
    v_lshlrev_b32 v{vL16}, 4, v{vL}
    s_and_b32 s{s_a}, s2, 7
    s_lshr_b32 s{s_b}, s2, 3
    s_lshr_b32 s{s_c}, s{s_a}, 1
    s_and_b32 s{s_d}, s{s_a}, 1
    s_and_b32 s3, s{s_b}, 3
    s_lshl_b32 s{s_t}, s{s_c}, 2
    s_add_u32 s{s_t}, s{s_t}, s3
    s_lshr_b32 s3, s{s_b}, 2
    s_lshl_b32 s{s_h}, s{s_d}, 3
    s_add_u32 s{s_h}, s{s_h}, s3
    s_and_b32 s3, s{s_b}, 7
    s_lshl_b32 s{s_tt}, s{s_c}, 3
    s_add_u32 s{s_tt}, s{s_tt}, s3
    s_lshr_b32 s3, s{s_b}, 3
    s_lshl_b32 s{s_ct}, s{s_d}, 2
    s_add_u32 s{s_ct}, s{s_ct}, s3
    s_cmp_lt_u32 s{s_ct}, 7
    s_cselect_b32 s{s_p2act}, 1, 0
    s_mul_i32 s3, s{s_b}, 37
    s_lshr_b32 s3, s3, 8
    s_lshl_b32 s{s_dt}, s{s_d}, 2
    s_add_u32 s{s_dt}, s{s_dt}, s3
    s_mul_i32 s4, s3, 7
    s_sub_u32 s4, s{s_b}, s4
    s_mul_i32 s{s_ft}, s{s_c}, 7
    s_add_u32 s{s_ft}, s{s_ft}, s4
    s_cmp_lt_u32 s3, 4
    s_cselect_b32 s{s_p3act}, 1, 0
    s_cmp_lt_u32 s{s_dt}, 7
    s_cselect_b32 s{s_p3act}, s{s_p3act}, 0
    s_mov_b32 s{s_pass}, 0
    s_mov_b32 s{s_retry}, 0
    s_waitcnt lgkmcnt(0)''')
    sizes = {sX: (80, 2048*448*2), sWQKV: (82, 448*1344*2), sWO: (84, 448*448*2), sW1: (88, 2048*1792*2), sB1: (90, 1792*2),
             sW2: (92, 1792*2048*2), sB2: (94, 2048*2), sOUT: (96, 2048*448*2), sDBG: (98, 256), sWS: (100, 64*MB), sXC: (80, 2048*448*2)}
    for s, (p, n) in sizes.items():
        e(f's_mov_b32 s{s}, s{p}\n s_and_b32 s{s+1}, s{p+1}, 0xffff\n s_mov_b32 s{s+2}, {n}\n s_mov_b32 s{s+3}, 0x20000')
    e(f'''s_and_b32 s3, s{s_w}, 1
    s_lshl_b32 s{s_tbo}, s{s_tt}, 1
    s_add_u32 s{s_tbo}, s{s_tbo}, s3
    s_lshr_b32 s3, s{s_w}, 1
    s_lshl_b32 s{s_cbo}, s{s_ct}, 1
    s_add_u32 s{s_cbo}, s{s_cbo}, s3
    s_lshl_b32 s{s_stg}, s{s_w}, 14
    s_add_u32 s{s_stg}, s{s_stg}, {LB}
    s_mov_b32 s{s_log2e}, {hx(f2u(LOG2E))}
    s_mov_b32 s{s_log2e+1}, {hx(f2u(LOG2E))}
    s_mov_b32 s{s_one}, 1.0
    s_mov_b32 s{s_one+1}, 1.0
    s_mov_b64 s[{s_cmask}:{s_cmask+1}], 0''')
    c0 = -2.0 * 0.7978845608028654 * LOG2E
    e(f'''s_mov_b32 s{s_c0}, {hx(f2u(c0))}
    s_mov_b32 s{s_c0+1}, {hx(f2u(c0))}
    s_mov_b32 s{s_c1}, {hx(f2u(c0*0.044715))}
    s_mov_b32 s{s_c1+1}, {hx(f2u(c0*0.044715))}''')
    e(f'''v_lshrrev_b32 v{vT0}, 5, v{vL}            ; hh
    v_bfe_u32 v{vT1}, v{vL}, 2, 2                  ; r
    v_bfe_u32 v{vT2}, v{vL}, 4, 1                  ; g&1
    v_and_b32 v{vT3}, 3, v{vL}
    v_lshlrev_b32 v{vT3}, 3, v{vT3}
    v_lshl_add_u32 v{vT3}, v{vT2}, 5, v{vT3}
    v_lshl_add_u32 v{vT3}, v{vT1}, 6, v{vT3}       ; r*64 + (g&1)*32 + (l&3)*8
    v_lshl_add_u32 v{vTR}, v{vT0}, 8, v{vT3}
    v_mul_u32_u24 v{vTRO}, 768, v{vT0}
    v_add_u32 v{vTRO}, 256, v{vTRO}
    v_add_u32 v{vTRO}, v{vTRO}, v{vT3}             ; hh? 1024 : 256
    v_lshl_add_u32 v{vWA0}, v{vT0}, 9, v{vT3}
    s_and_b32 s3, s{s_h}, 1
    s_lshl_b32 s3, s3, 3
    v_add_u32 v{vWA0}, s3, v{vWA0}
    v_add_u32 v{vWA1}, 256, v{vWA0}
    v_add_u32 v{vWQ0}, 57344, v{vWA0}
    v_add_u32 v{vWQ1}, 57344, v{vWA1}
    v_add_u32 v{vTR}, s{s_stg}, v{vTR}
    v_add_u32 v{vTRO}, s{s_stg}, v{vTRO}
    v_and_b32 v{vT1}, 31, v{vL}                    ; c
    v_mul_u32_u24 v{vXOFF}, 896, v{vT1}
    v_lshl_add_u32 v{vXOFF}, v{vT0}, 4, v{vXOFF}
    v_cmp_gt_u32 vcc, 28, v{vT1}
    v_cndmask_b32 v{vM28}, 0, -1, vcc
    v_cmp_eq_u32 vcc, 28, v{vT1}
    v_mov_b32 v{vT2}, 0x3f803f80
    v_cndmask_b32 v{vONE28}, 0, v{vT2}, vcc
    v_cmp_gt_u32 vcc, 32, v{vL}
    v_cndmask_b32 v{vMLO}, 0, -1, vcc
    v_mov_b32 v{vCE2}, {hx(f2u(-1e-6*LOG2E))}
    v_mov_b32 v{vCE2+1}, {hx(f2u(-1e-6*LOG2E))}
    v_mov_b32 v{vCE}, {hx(f2u(-1e-6))}
    v_mov_b32 v{vCE+1}, {hx(f2u(-1e-6))}''')
    if stamps:
        for i in range(14): e(f's_mov_b32 s{88+i}, 0')
    g.stamp(0)
    e(f'''s_lshl_b32 s3, s{s_t}, 2
    s_add_u32 s3, s3, s{s_w}
    s_mul_i32 s{s_xbase}, s3, {32*896}
    s_mov_b32 s{s_xstep}, 32''')
    e(f'''s_mul_i32 s{s_a}, s{s_tbo}, {32*896}
    s_lshl_b32 s3, s{s_cbo}, 6
    s_add_u32 s{s_a}, s{s_a}, s3
    v_mul_u32_u24 v{vT2}, 896, v{vT1}
    v_lshl_add_u32 v{vT2}, v{vT0}, 3, v{vT2}''')
    for q in range(4):
        e.vmem(f'buffer_load_dwordx2 {vr(STR+2*q,2)}, v{vT2}, {g.srd(sX)}, s{s_a} offen offset:{16*q}', 'res')
    e(f's_lshl_b32 s{s_a}, s{s_tbo}, 6\n v_lshlrev_b32 v{vT2}, 1, v{vT1}')
    e.vmem(f'buffer_load_ushort v{vB2}, v{vT2}, {g.srd(sB2)}, s{s_a} offen', 'res')
    e(f'''s_lshl_b32 s3, s2, 2
    s_add_u32 s3, s3, s{s_w}
    s_mul_i32 s{s_a}, s3, {15*1024}
    v_mov_b32 v{STR+16}, -1
    v_mov_b32 v{STR+17}, -1
    v_mov_b32 v{STR+18}, -1
    v_mov_b32 v{STR+19}, -1''')
    for i in range(15):
        e.vmem(f'buffer_store_dwordx4 {vr(STR+16,4)}, v{vL16}, {g.srd(sWS)}, s{s_a} offen sc0 sc1', 'pre')
        e(f's_add_u32 s{s_a}, s{s_a}, 1024')
    e.wait_vm('res')
    for q in range(4):
        for i in range(2):
            e(f'v_lshlrev_b32 v{vRES+4*q+2*i}, 16, v{STR+2*q+i}\n v_and_b32 v{vRES+4*q+2*i+1}, 0xffff0000, v{STR+2*q+i}')
    e(f'v_lshlrev_b32 v{vB2}, 16, v{vB2}')
    e.wait_vm()
    e('s_barrier')
    lskip = g.nl('IA')
    e(f'''s_cmp_lg_u32 s{s_w}, 0
    s_cbranch_scc1 {lskip}
    s_and_b32 s3, s2, 1
    s_lshl_b32 s3, s3, 7
    v_mov_b32 v{vT2}, 0
    v_mov_b32 v{vT3}, 1
    s_mov_b64 exec, 1
    buffer_atomic_add v{vT3}, v{vT2}, {g.srd(sDBG)}, s3 offen sc1
    s_mov_b64 exec, -1''')
    e.label(lskip)

    e.label('L_pass')
    g.stamp(1)
    e(f'''v_lshrrev_b32 v{vDMA}, 2, v{vL}
    v_mul_u32_u24 v{vDMA}, 2688, v{vDMA}
    v_and_b32 v{vT0}, 3, v{vL}
    v_lshl_add_u32 v{vDMA}, v{vT0}, 4, v{vDMA}
    s_mul_i32 s{s_b}, s{s_h}, 56
    s_and_b32 s{s_b}, s{s_b}, 0xfffffff0
    s_mul_i32 s3, s{s_w}, {7*16*2688}
    s_add_u32 s{s_b}, s{s_b}, s3
    s_mul_i32 s{s_c}, s{s_w}, {7*1024}''')
    for ti, goff in enumerate((896, 1792, 0)):
        for b in range(7):
            e(f's_add_u32 m0, s{s_c}, {LA + ti*28672 + b*1024}')
            e(f's_add_u32 s{s_a}, s{s_b}, {goff + b*16*2688}')
            e.vmem(f'buffer_load_dwordx4 v{vDMA}, {g.srd(sWQKV)}, s{s_a} offen lds', 'wqkv')
    XF = STR
    lp0, lp1 = g.nl('P1a'), g.nl('P1b')
    e(f's_cmp_eq_u32 s{s_pass}, 0\n s_cbranch_scc1 {lp0}')
    e(f'''v_min_u32 v{vT0}, 27, v{vL}
    v_lshlrev_b32 v{vT0}, 10, v{vT0}
    v_add_u32 v{vT0}, 1020, v{vT0}''')
    save = list(e.vm)
    g.probe(vT0, s_xbase)
    e.label(lp0); e.vm = save
    def xload(em, j0, n, tagged):
        em(f's_mul_i32 s{s_a}, s{s_xstep}, {j0}\n s_add_u32 s{s_a}, s{s_a}, s{s_xbase}')
        for j in range(j0, j0+n):
            t = f'buffer_load_dwordx4 {vr(XF+4*j,4)}, v{vXOFF}, {g.srd(sXC)}, s{s_a} offen sc1'
            if tagged: em.vmem(t, ('x', j))
            else: em(t)
            em(f's_add_u32 s{s_a}, s{s_a}, s{s_xstep}')
    xload(e, 0, 28, True)
    e.wait_vm('wqkv')
    e('s_barrier')
    g.stamp(2)
    lq1, lq2 = g.nl('S1'), g.nl('S2')
    e(f's_cmp_lg_u32 s{s_pass}, 0\n s_cbranch_scc1 {lq1}')
    ONES = 240
    for i in range(4): e(f'v_mov_b32 v{ONES+i}, 0x3f803f80')
    e(f'''s_mul_i32 s{s_a}, s{s_w}, {7*1024}
    v_add_u32 v{vT0}, s{s_a}, v{vWA0}
    v_add_u32 v{vT1}, s{s_a}, v{vWQ0}''')
    FR = 112
    F2 = 246
    for j in range(7):
        for ti in range(2):
            e.lds(f'ds_read_b64_tr_b16 {vr(FR+4*ti,2)}, v{vT0} offset:{ti*28672 + j*1024}')
            e.lds(f'ds_read_b64_tr_b16 {vr(FR+4*ti+2,2)}, v{vT0} offset:{ti*28672 + j*1024 + 256}')
        e.lds(f'ds_read_b64_tr_b16 {vr(FR+8,2)}, v{vT1} offset:{j*1024}')
        e.lds(f'ds_read_b64_tr_b16 {vr(FR+10,2)}, v{vT1} offset:{j*1024 + 256}')
        e.wait_lg()
        c = lambda b: '0' if j == 0 else vr(b, 16)
        e(f'v_mfma_f32_32x32x16_bf16 {vr(ACC,16)}, {vr(ONES,4)}, {vr(FR,4)}, {c(ACC)}')
        e(f'v_mfma_f32_32x32x16_bf16 {vr(ACC+16,16)}, {vr(ONES,4)}, {vr(FR+4,4)}, {c(ACC+16)}')
        e(f'v_mfma_f32_32x32x16_bf16 {vr(ACC+32,16)}, {vr(FR+8,4)}, {vr(ONES,4)}, {c(ACC+32)}')
        e('s_nop 3')
    e(f'v_add_u32 v{vT0}, s{s_stg}, v{vL16}\n v_lshlrev_b32 v{vT1}, 2, v{vL}\n v_add_u32 v{vT2}, s{s_stg}, v{vT1}')
    for q in range(4): e.lds(f'ds_write_b128 v{vT0}, {vr(ACC+32+4*q,4)} offset:{q*1024}')
    e.lds(f'ds_write_b32 v{vT2}, v{ACC} offset:4096')
    e.lds(f'ds_write_b32 v{vT2}, v{ACC+16} offset:4352')
    e.wait_lg()
    e('s_barrier')
    e(f'v_add_u32 v{vT0}, {LB}, v{vL16}\n v_add_u32 v{vT2}, {LB}, v{vT1}')
    for w in range(4):
        for q in range(4): e.lds(f'ds_read_b128 {vr(ACC+16*w+4*q,4)}, v{vT0} offset:{w*16384+q*1024}')
        e.wait_lg()
    for w in range(4):
        e.lds(f'ds_read_b32 v{F2+w}, v{vT2} offset:{w*16384+4096}')
        e.lds(f'ds_read_b32 v{F2+4+w}, v{vT2} offset:{w*16384+4352}')
    e.wait_lg()
    for r in range(0, 16, 2):
        e(f'v_pk_add_f32 {vr(ACC+r,2)}, {vr(ACC+r,2)}, {vr(ACC+16+r,2)}')
        e(f'v_pk_add_f32 {vr(ACC+32+r,2)}, {vr(ACC+32+r,2)}, {vr(ACC+48+r,2)}')
        e(f'v_pk_add_f32 {vr(vCSQ+r,2)}, {vr(ACC+r,2)}, {vr(ACC+32+r,2)}')
    e(f'''v_add_f32 v{F2}, v{F2}, v{F2+1}
    v_add_f32 v{F2+2}, v{F2+2}, v{F2+3}
    v_add_f32 v{vCSK}, v{F2}, v{F2+2}
    v_add_f32 v{F2+4}, v{F2+4}, v{F2+5}
    v_add_f32 v{F2+6}, v{F2+6}, v{F2+7}
    v_add_f32 v{vCSV}, v{F2+4}, v{F2+6}''')
    save = list(e.vm)
    for i in range(4): e(f'v_mov_b32 v{FR+i}, 0')
    for j in range(28):
        e.wait_vm(('x', j))
        for i in range(4):
            r = XF+4*j+i
            e(f'v_dot2_f32_bf16 v{FR+(i&1)}, v{r}, v{ONES}, v{FR+(i&1)}')
            e(f'v_dot2_f32_bf16 v{FR+2+(i&1)}, v{r}, v{r}, v{FR+2+(i&1)}')
    e(f'''v_add_f32 v{vT0}, v{FR}, v{FR+1}
    v_add_f32 v{vT1}, v{FR+2}, v{FR+3}
    v_permlane32_swap_b32 v{vT0}, v{vT1}
    v_add_f32 v{vT0}, v{vT0}, v{vT1}
    s_barrier
    s_branch {lq2}''')
    e.label(lq1); e.vm = save
    def stat_load(em, sb, base, tagged=None):
        for i in range(14):
            t = f'buffer_load_dword v{base+i}, v{vT2}, {g.srd(sWS)}, s{sb} offen offset:{i*256} sc1'
            if tagged: em.vmem(t, tagged)
            else: em(t)
    def stat_sum(base):
        for i in range(0, 12, 4):
            pass
        e(f'v_pk_add_f32 {vr(base,2)}, {vr(base,2)}, {vr(base+2,2)}')
        e(f'v_pk_add_f32 {vr(base+4,2)}, {vr(base+4,2)}, {vr(base+6,2)}')
        e(f'v_pk_add_f32 {vr(base+8,2)}, {vr(base+8,2)}, {vr(base+10,2)}')
        e(f'v_pk_add_f32 {vr(base,2)}, {vr(base,2)}, {vr(base+4,2)}')
        e(f'v_pk_add_f32 {vr(base+8,2)}, {vr(base+8,2)}, {vr(base+12,2)}')
        e(f'v_pk_add_f32 {vr(base,2)}, {vr(base,2)}, {vr(base+8,2)}')
        e(f'v_add_f32 v{vT0}, v{base}, v{base+1}')
    e(f'''s_lshl_b32 s3, s{s_t}, 2
    s_add_u32 s3, s3, s{s_w}
    s_mul_i32 s{s_e}, s3, {14*256}
    s_add_u32 s{s_e}, s{s_e}, {SX}
    v_lshlrev_b32 v{vT2}, 2, v{vL}''')
    stat_load(e, s_e, 112, 'sx')
    e.wait_vm('sx')
    g.check(range(112, 126), lambda em: stat_load(em, s_e, 112))
    stat_sum(112)
    e.label(lq2); e.vm = []
    vR, vM = 244, 245
    def meanvar():
        e(f'''v_mov_b32 v{vT1}, v{vT0}
        v_permlane32_swap_b32 v{vT0}, v{vT1}
        v_mul_f32 v{vT0}, {hx(f2u(1/448))}, v{vT0}
        v_mul_f32 v{vT1}, {hx(f2u(1/448))}, v{vT1}
        v_fma_f32 v{vT1}, -v{vT0}, v{vT0}, v{vT1}
        v_max_f32 v{vT1}, 0, v{vT1}''')
    meanvar()
    e(f'''v_add_f32 v{vT2}, {hx(f2u(1e-5))}, v{vT1}
    v_rsq_f32 v{vR}, v{vT2}
    v_mul_f32 v{vM}, v{vT0}, v{vR}
    v_bfi_b32 v{vT2}, v{vMLO}, v{vR}, v{vM}
    s_lshl_b32 s3, s{s_w}, 8
    s_add_u32 s3, s3, {L_STAT}
    v_lshl_add_u32 v{vT3}, v{vL}, 2, s3''')
    e.lds(f'ds_write_b32 v{vT3}, v{vT2}')
    e.wait_lg()
    AK, AV, AQ = ACC, ACC+16, ACC+32
    ring = lambda s: (112 + 8*s) if s < 2 else (248 if s == 2 else None)
    NR = 3
    def kvread(j):
        b = ring(j % NR)
        for ti in range(2):
            e.lds(f'ds_read_b64_tr_b16 {vr(b+4*ti,2)}, v{vWA0} offset:{ti*28672 + j*1024}', ('w', j))
            e.lds(f'ds_read_b64_tr_b16 {vr(b+4*ti+2,2)}, v{vWA1} offset:{ti*28672 + j*1024}', ('w', j))
    kvread(0); kvread(1)
    for j in range(28):
        if j % 4 == 0:
            g.check(range(XF+4*j, XF+4*j+16), lambda em, j=j: xload(em, j, 4, False), mask=f's[{s_cmask}:{s_cmask+1}]')
        if j + 2 < 28: kvread(j+2)
        e.wait_lg(('w', j))
        b = ring(j % NR)
        e(f'v_mfma_f32_32x32x16_bf16 {vr(AK,16)}, {vr(XF+4*j,4)}, {vr(b,4)}, {"0" if j==0 else vr(AK,16)}')
        e(f'v_mfma_f32_32x32x16_bf16 {vr(AV,16)}, {vr(XF+4*j,4)}, {vr(b+4,4)}, {"0" if j==0 else vr(AV,16)}')
    RR, MM = ACC+32, ACC+48
    e(f'''s_lshl_b32 s3, s{s_w}, 8
    s_add_u32 s3, s3, {L_STAT}
    v_lshrrev_b32 v{vT0}, 5, v{vL}
    v_lshl_add_u32 v{vT3}, v{vT0}, 4, s3''')
    for q in range(4):
        e.lds(f'ds_read_b128 {vr(RR+4*q,4)}, v{vT3} offset:{32*q}')
        e.lds(f'ds_read_b128 {vr(MM+4*q,4)}, v{vT3} offset:{128+32*q}')
    e.wait_lg()
    PK, PV = AK, AV
    def phi_pair(acc, Rop, Cexpr, dst):
        Cexpr()
        e(f'v_pk_fma_f32 {vr(acc,2)}, {vr(acc,2)}, {Rop[0]}, {vr(vT0,2)} {Rop[1]} neg_lo:[0,0,1] neg_hi:[0,0,1]')
        e(f'v_pk_fma_f32 {vr(vT0,2)}, {vr(acc,2)}, s[{s_log2e}:{s_log2e+1}], {vr(vCE2,2)}')
        e(f'v_exp_f32_e64 v{vT0}, v{vT0} clamp\n v_exp_f32_e64 v{vT1}, v{vT1} clamp')
        e(f'v_max_f32 v{acc}, {hx(f2u(1e-6))}, v{acc}\n v_max_f32 v{acc+1}, {hx(f2u(1e-6))}, v{acc+1}')
        e(f'v_pk_add_f32 {vr(acc,2)}, {vr(acc,2)}, {vr(vT0,2)}')
        e(f'v_cvt_pk_bf16_f32 v{dst}, v{acc}, v{acc+1}')
    e(f'v_mov_b32 v246, v{vCSK}\n v_mov_b32 v247, v{vCSV}')
    for r in range(0, 16, 2):
        phi_pair(AK+r, (vr(RR+r,2), ''), lambda r=r: e(f'v_pk_fma_f32 {vr(vT0,2)}, {vr(MM+r,2)}, v[246:247], {vr(vCE,2)} op_sel_hi:[1,0,1]'), PK + r//2)
        e(f'v_and_b32 v{PK+r//2}, v{vM28}, v{PK+r//2}')
    for r in range(0, 16, 2):
        e(f'v_pk_mul_f32 {vr(vT0,2)}, {vr(MM+r,2)}, v[246:247] op_sel:[0,1] op_sel_hi:[1,1]')
        e(f'v_pk_fma_f32 {vr(AV+r,2)}, {vr(AV+r,2)}, {vr(RR+r,2)}, {vr(vT0,2)} neg_lo:[0,0,1] neg_hi:[0,0,1]')
        e(f'v_cvt_pk_bf16_f32 v{PV+r//2}, v{AV+r}, v{AV+r+1}')
        e(f'v_and_or_b32 v{PV+r//2}, v{PV+r//2}, v{vM28}, v{vONE28}')
    e(f'v_mfma_f32_32x32x16_bf16 {vr(RR,16)}, {vr(PK,4)}, {vr(PV,4)}, 0')
    e(f'v_mfma_f32_32x32x16_bf16 {vr(RR,16)}, {vr(PK+4,4)}, {vr(PV+4,4)}, {vr(RR,16)}')
    e(f'v_add_u32 v{vT0}, s{s_stg}, v{vL16}')
    for q in range(4): e.lds(f'ds_write_b128 v{vT0}, {vr(RR+4*q,4)} offset:{q*1024}')
    e.wait_lg()
    e(f'''s_barrier
    s_lshl_b32 s3, s{s_w}, 10
    s_add_u32 s3, s3, {LB}
    v_add_u32 v{vT0}, s3, v{vL16}''')
    for w in range(4): e.lds(f'ds_read_b128 {vr(AV+4*w,4)}, v{vT0} offset:{w*16384}')
    e.wait_lg()
    for i in (0, 2):
        e(f'v_pk_add_f32 {vr(AV+i,2)}, {vr(AV+i,2)}, {vr(AV+4+i,2)}')
        e(f'v_pk_add_f32 {vr(AV+8+i,2)}, {vr(AV+8+i,2)}, {vr(AV+12+i,2)}')
        e(f'v_pk_add_f32 {vr(AV+i,2)}, {vr(AV+i,2)}, {vr(AV+8+i,2)}')
    lib, lid = g.nl('IB'), g.nl('ID')
    e(f's_cmp_lg_u32 s{s_pass}, 0\n s_cbranch_scc1 {lid}')
    e(f'v_and_b32 v{vT0}, 1, v{vL}\n v_lshlrev_b32 v{vT0}, 7, v{vT0}')
    e.label(lib)
    e(f'''buffer_load_dword v{vT1}, v{vT0}, {g.srd(sDBG)}, 0 offen sc1
    s_waitcnt vmcnt(0)
    v_cmp_gt_u32 vcc, 128, v{vT1}
    s_and_b64 s[{s_tmp2}:{s_tmp2+1}], vcc, exec
    s_cbranch_scc0 {lid}
    s_add_u32 s{s_retry}, s{s_retry}, 1
    s_cmp_gt_u32 s{s_retry}, {RETRY_MAX}
    s_cbranch_scc0 {lib}''')
    e.label(lid)
    g.passofs(s_e, PART, PART_SZ)
    e(f'''s_lshl_b32 s3, s{s_h}, 16
    s_add_u32 s{s_e}, s{s_e}, s3
    s_lshl_b32 s3, s{s_w}, 10
    s_add_u32 s{s_e}, s{s_e}, s3
    s_lshl_b32 s3, s{s_t}, 12
    s_add_u32 s{s_f}, s{s_e}, s3''')
    e.vmem(f'buffer_store_dwordx4 {vr(AV,4)}, v{vL16}, {g.srd(sWS)}, s{s_f} offen sc0 sc1')
    g.stamp(3)
    qring = lambda s: 112 + 4*s
    def qread(j):
        b = qring(j % 4)
        e.lds(f'ds_read_b64_tr_b16 {vr(b,2)}, v{vWQ0} offset:{j*1024}', ('w', j))
        e.lds(f'ds_read_b64_tr_b16 {vr(b+2,2)}, v{vWQ1} offset:{j*1024}', ('w', j))
    for j in range(3): qread(j)
    for j in range(28):
        if j + 3 < 28: qread(j+3)
        e.wait_lg(('w', j))
        e(f'v_mfma_f32_32x32x16_bf16 {vr(AQ,16)}, {vr(qring(j%4),4)}, {vr(XF+4*j,4)}, {"0" if j==0 else vr(AQ,16)}')
    for r in range(0, 16, 2):
        phi_pair(AQ+r, (f'v[{vR}:{vM}]', 'op_sel_hi:[1,0,1]'),
                 lambda r=r: e(f'v_pk_fma_f32 {vr(vT0,2)}, {vr(vCSQ+r,2)}, v[{vR}:{vM}], {vr(vCE,2)} op_sel:[0,1,0] op_sel_hi:[1,1,1]'), vPQ + r//2)
    e(f'v_and_b32 v{vPQ+6}, v{vMLO}, v{vPQ+6}\n v_and_b32 v{vPQ+7}, v{vMLO}, v{vPQ+7}')
    g.stamp(4)
    def part_load(em, tagged=None):
        em(f's_mov_b32 s{s_a}, s{s_e}')
        for t in range(16):
            x = f'buffer_load_dwordx4 {vr(STR+4*t,4)}, v{vL16}, {g.srd(sWS)}, s{s_a} offen sc1'
            if tagged: em.vmem(x, tagged)
            else: em(x)
            em(f's_add_u32 s{s_a}, s{s_a}, 4096')
    part_load(e, 'part')
    e.wait_vm()
    g.check(range(STR, STR+64), part_load)
    for step in (32, 16, 8, 4):
        for i in range(0, step, 2):
            e(f'v_pk_add_f32 {vr(STR+i,2)}, {vr(STR+i,2)}, {vr(STR+step+i,2)}')
    e(f'''v_cvt_pk_bf16_f32 v{STR}, v{STR}, v{STR+1}
    v_cvt_pk_bf16_f32 v{STR+1}, v{STR+2}, v{STR+3}
    s_lshr_b32 s3, s{s_w}, 1
    s_lshl_b32 s3, s3, 10
    s_and_b32 s{s_a}, s{s_w}, 1
    s_lshl_b32 s{s_a}, s{s_a}, 3
    s_add_u32 s3, s3, s{s_a}
    s_add_u32 s3, s3, {L_KVF}
    v_add_u32 v{vT0}, s3, v{vL16}
    v_add_u32 v{vT1}, {L_KVF}, v{vL16}''')
    e.lds(f'ds_write_b64 v{vT0}, {vr(STR,2)}')
    e.wait_lg()
    e('s_barrier')
    e.lds(f'ds_read_b128 {vr(STR+8,4)}, v{vT1}')
    e.lds(f'ds_read_b128 {vr(STR+12,4)}, v{vT1} offset:1024')
    e.wait_lg()
    e(f'v_mfma_f32_32x32x16_bf16 {vr(ACC,16)}, {vr(STR+8,4)}, {vr(vPQ,4)}, 0')
    e(f'v_mfma_f32_32x32x16_bf16 {vr(ACC,16)}, {vr(STR+12,4)}, {vr(vPQ+4,4)}, {vr(ACC,16)}')
    e(f'''v_mov_b32 v{vT0}, v{ACC+12}
    v_mov_b32 v{vT1}, v{ACC+12}
    v_permlane32_swap_b32 v{vT0}, v{vT1}
    v_add_f32 v{vT1}, {hx(f2u(1e-6))}, v{vT1}
    v_rcp_f32 v{vT0}, v{vT1}''')
    for r in range(0, 16, 2):
        e(f'v_pk_mul_f32 {vr(ACC+r,2)}, {vr(ACC+r,2)}, {vr(vT0,2)} op_sel_hi:[1,0]')
        e(f'v_cvt_pk_bf16_f32 v{STR+r//2}, v{ACC+r}, v{ACC+r+1}')
    e(f'v_and_b32 v{STR+6}, v{vMLO}, v{STR+6}\n v_and_b32 v{STR+7}, v{vMLO}, v{STR+7}')
    g.passofs(s_e, O_, O_SZ)
    e(f'''s_lshl_b32 s3, s{s_t}, 2
    s_add_u32 s3, s3, s{s_w}
    s_lshl_b32 s3, s3, 15
    s_add_u32 s{s_f}, s{s_e}, s3
    s_lshl_b32 s3, s{s_h}, 11
    s_add_u32 s{s_f}, s{s_f}, s3''')
    e.vmem(f'buffer_store_dwordx4 {vr(STR,4)}, v{vL16}, {g.srd(sWS)}, s{s_f} offen sc0 sc1')
    e.vmem(f'buffer_store_dwordx4 {vr(STR+4,4)}, v{vL16}, {g.srd(sWS)}, s{s_f} offen offset:1024 sc0 sc1')
    g.stamp(5)
    e(f's_cmp_eq_u32 s{s_p2act}, 0\n s_cbranch_scc1 L_passend')
    g.dma_voff(896)
    e(f'''s_mul_i32 s{s_b}, s{s_w}, {112*896}
    s_lshl_b32 s3, s{s_ct}, 7
    s_add_u32 s{s_b}, s{s_b}, s3''')
    g.wdma(sWO, s_b, 896, 0, 15, 0, 'wo')
    e.wait_vm('wo')
    WOF = 192
    for i in range(4):
        for j in range(2):
            for db in range(2):
                d = WOF + ((2*i+j)*2+db)*4
                for half in range(2):
                    if i % 2 == 0: a, blk = vTR, (28*i)//8 + 2*j + half
                    else: a, blk = vTRO, (28*i-4)//8 + 2*j + half
                    e.lds(f'ds_read_b64_tr_b16 {vr(d+2*half,2)}, v{a} offset:{blk*1024 + db*512}')
        e.wait_lg()
    e(f'''s_lshl_b32 s3, s{s_tt}, 16
    s_add_u32 s{s_e}, s{s_e}, s3
    s_lshl_b32 s3, s{s_w}, 13
    s_add_u32 s{s_e}, s{s_e}, s3
    v_and_b32 v{vT0}, 7, v{vL}
    v_lshlrev_b32 v{vT0}, 10, v{vT0}
    v_bfe_u32 v{vT1}, v{vL}, 3, 1
    v_lshl_add_u32 v{vT0}, v{vT1}, 15, v{vT0}
    v_add_u32 v{vT0}, 1020, v{vT0}''')
    g.probe(vT0, s_e)
    OF = STR
    def o_load(em, tagged=None):
        for tbl in range(2):
            for hf in range(2):
                em(f's_add_u32 s{s_a}, s{s_e}, {tbl*32768 + hf*4096}')
                for s in range(4):
                    x = f'buffer_load_dwordx4 {vr(OF+(tbl*8+hf*4+s)*4,4)}, v{vL16}, {g.srd(sWS)}, s{s_a} offen offset:{s*1024} sc1'
                    if tagged: em.vmem(x, tagged)
                    else: em(x)
    o_load(e, 'o'); e.wait_vm()
    g.check(range(OF, OF+64), o_load)
    tile = lambda db, tbl: ACC + (db*2+tbl)*16
    for s in range(8):
        for db in range(2):
            for tbl in range(2):
                t = tile(db, tbl)
                e(f'v_mfma_f32_32x32x16_bf16 {vr(t,16)}, {vr(WOF+(s*2+db)*4,4)}, {vr(OF+(tbl*8+s)*4,4)}, {"0" if s==0 else vr(t,16)}')
    g.reduce4([ACC, ACC+16, ACC+32, ACC+48])
    def stats_publish(sbase_const, per_pass):
        T = STR
        for r in range(0, 8, 2): e(f'v_pk_add_f32 {vr(T+r,2)}, {vr(vRES+r,2)}, {vr(vRES+8+r,2)}')
        e(f'v_pk_mul_f32 {vr(T+8,2)}, {vr(vRES,2)}, {vr(vRES,2)}')
        e(f'v_pk_mul_f32 {vr(T+10,2)}, {vr(vRES+2,2)}, {vr(vRES+2,2)}')
        for r in range(4, 16, 4):
            e(f'v_pk_fma_f32 {vr(T+8,2)}, {vr(vRES+r,2)}, {vr(vRES+r,2)}, {vr(T+8,2)}')
            e(f'v_pk_fma_f32 {vr(T+10,2)}, {vr(vRES+r+2,2)}, {vr(vRES+r+2,2)}, {vr(T+10,2)}')
        e(f'''v_pk_add_f32 {vr(T,2)}, {vr(T,2)}, {vr(T+2,2)}
        v_pk_add_f32 {vr(T+4,2)}, {vr(T+4,2)}, {vr(T+6,2)}
        v_pk_add_f32 {vr(T+8,2)}, {vr(T+8,2)}, {vr(T+10,2)}
        v_pk_add_f32 {vr(T,2)}, {vr(T,2)}, {vr(T+4,2)}
        v_add_f32 v{vT1}, v{T+8}, v{T+9}
        v_add_f32 v{vT0}, v{T}, v{T+1}
        v_permlane32_swap_b32 v{vT0}, v{vT1}
        v_add_f32 v{vT0}, v{vT0}, v{vT1}''')
        if per_pass: g.passofs(s_e, sbase_const, ST_SZ)
        else: e(f's_mov_b32 s{s_e}, {sbase_const}')
        e(f'''s_mul_i32 s3, s{s_tbo}, {14*256}
        s_add_u32 s{s_e}, s{s_e}, s3
        s_lshl_b32 s3, s{s_cbo}, 8
        s_add_u32 s{s_f}, s{s_e}, s3
        v_lshlrev_b32 v{vT2}, 2, v{vL}''')
        e.vmem(f'buffer_store_dword v{vT0}, v{vT2}, {g.srd(sWS)}, s{s_f} offen sc0 sc1')
    for r in range(0, 16, 2): e(f'v_pk_add_f32 {vr(vRES+r,2)}, {vr(vRES+r,2)}, {vr(ACC+r,2)}')
    stats_publish(ST, True)
    g.stamp(6)
    stat_load(e, s_e, STR+16, 'st'); e.wait_vm()
    g.check(range(STR+16, STR+30), lambda em: stat_load(em, s_e, STR+16))
    stat_sum(STR+16)
    meanvar()
    e(f'''v_add_f32 v{vT2}, {hx(f2u(1e-5))}, v{vT1}
    v_rsq_f32 v{vT2}, v{vT2}
    v_mul_f32 v{vT1}, v{vT1}, v{vT2}
    v_mov_b32 v{vT3}, {hx(f2u(1e-5))}
    v_fma_f32 v{vT1}, v{vT1}, v{vT2}, v{vT3}
    v_rsq_f32 v{vT1}, v{vT1}
    v_mul_f32 v{vT2}, v{vT2}, v{vT1}
    v_mul_f32 v{vT3}, v{vT0}, v{vT2}''')
    for r in range(0, 16, 2):
        e(f'v_pk_fma_f32 {vr(ACC+r,2)}, {vr(vRES+r,2)}, {vr(vT2,2)}, {vr(vT2,2)} op_sel:[0,0,1] op_sel_hi:[1,0,1] neg_lo:[0,0,1] neg_hi:[0,0,1]')
        e(f'v_cvt_pk_bf16_f32 v{STR+r//2}, v{ACC+r}, v{ACC+r+1}')
    e(f'''s_lshl_b32 s3, s{s_w}, 11
    s_add_u32 s3, s3, {L_TRN}
    v_and_b32 v{vT0}, 31, v{vL}
    v_bfe_u32 v{vT1}, v{vL}, 1, 3
    v_lshrrev_b32 v{vT2}, 5, v{vL}
    v_xor_b32 v{vT1}, v{vT1}, v{vT2}
    v_lshl_add_u32 v{vT0}, v{vT0}, 6, s3''')
    for q in range(4):
        e(f'v_xor_b32 v{vT2}, {2*q}, v{vT1}\n v_lshl_add_u32 v{vT2}, v{vT2}, 3, v{vT0}')
        e.lds(f'ds_write_b64 v{vT2}, {vr(STR+2*q,2)}')
    e(f'''v_lshrrev_b32 v{vT1}, 5, v{vL}
    v_bfe_u32 v{vT2}, v{vL}, 2, 2
    v_lshl_add_u32 v{vT1}, v{vT1}, 2, v{vT2}       ; 4hh + r
    v_bfe_u32 v{vT2}, v{vL}, 4, 1
    v_and_b32 v{vT3}, 3, v{vL}
    v_lshl_add_u32 v{vT2}, v{vT2}, 2, v{vT3}       ; slot
    v_lshrrev_b32 v{vT3}, 1, v{vT1}
    v_xor_b32 v{vT2}, v{vT2}, v{vT3}
    v_lshl_add_u32 v{vT1}, v{vT1}, 6, s3
    v_lshl_add_u32 v{vT0}, v{vT2}, 3, v{vT1}       ; half 0
    v_xor_b32 v{vT2}, 4, v{vT2}
    v_lshl_add_u32 v{vT1}, v{vT2}, 3, v{vT1}''')
    e.wait_lg()
    for jj in range(2):
        e.lds(f'ds_read_b64_tr_b16 {vr(STR+8+4*jj,2)}, v{vT0} offset:{jj*1024}')
        e.lds(f'ds_read_b64_tr_b16 {vr(STR+10+4*jj,2)}, v{vT1} offset:{jj*1024+512}')
    g.passofs(s_e, HT, HT_SZ)
    e(f'''s_lshl_b32 s3, s{s_ct}, 18
    s_add_u32 s{s_f}, s{s_e}, s3
    s_lshl_b32 s3, s{s_tbo}, 12
    s_add_u32 s{s_f}, s{s_f}, s3
    s_lshr_b32 s3, s{s_w}, 1
    s_lshl_b32 s3, s3, 10
    s_add_u32 s{s_f}, s{s_f}, s3''')
    e.wait_lg()
    e.vmem(f'buffer_store_dwordx4 {vr(STR+8,4)}, v{vL16}, {g.srd(sWS)}, s{s_f} offen sc0 sc1')
    e.vmem(f'buffer_store_dwordx4 {vr(STR+12,4)}, v{vL16}, {g.srd(sWS)}, s{s_f} offen offset:2048 sc0 sc1')
    g.stamp(7)

    def wload(srd, pitch, nsteps):
        nblk = nsteps*2
        for p0 in range(0, nblk, 16):
            n = min(16, nblk - p0)
            g.wdma(srd, s_b, pitch, p0, n, 0, 'w')
            e.wait_vm('w')
            for jl in range(n//2):
                j = p0//2 + jl
                for cb in range(2):
                    for half in range(2):
                        e.lds(f'ds_read_b64_tr_b16 {ar((j*2+cb)*4+2*half,2)}, v{vTR} offset:{(2*jl+half)*1024+cb*512}')
                if jl % 2 == 1: e.wait_lg()
            e.wait_lg()
    NW = 3 if True else 4
    def biggemm(nsteps, act_is_A):
        ng = nsteps // 4
        def gload(em, gi, tagged):
            for hf in range(2):
                em(f's_add_u32 s{s_a}, s{s_e}, {gi*8192 + hf*4096}')
                for s in range(4):
                    x = f'buffer_load_dwordx4 {vr(STR+(gi%NW)*32+(hf*4+s)*4,4)}, v{vL16}, {g.srd(sWS)}, s{s_a} offen offset:{s*1024} sc1'
                    if tagged: em.vmem(x, ('g', gi))
                    else: em(x)
        e(f'''v_min_u32 v{vT0}, {nsteps*2-1}, v{vL}
        v_lshlrev_b32 v{vT0}, 10, v{vT0}
        v_add_u32 v{vT0}, 1020, v{vT0}''')
        g.probe(vT0, s_e)
        for gi in range(min(NW, ng)): gload(e, gi, True)
        for gi in range(ng):
            e.wait_vm(('g', gi))
            b = STR + (gi % NW)*32
            g.check(range(b, b+32), lambda em, gi=gi: gload(em, gi, False))
            for s in range(4):
                j = gi*4 + s
                for cb in range(2):
                    for db in range(2):
                        act = vr(b + (s*2+db)*4, 4); wt = ar((j*2+cb)*4, 4)
                        if act_is_A: t = ACC + (db*2+cb)*16; A, B = act, wt
                        else: t = ACC + (cb*2+db)*16; A, B = wt, act
                        e(f'v_mfma_f32_32x32x16_bf16 {vr(t,16)}, {A}, {B}, {"0" if j==0 else vr(t,16)}')
            if gi + NW < ng: gload(e, gi + NW, True)
    e(f's_cmp_eq_u32 s{s_p3act}, 0\n s_cbranch_scc1 L_p4')
    g.dma_voff(3584)
    e(f'''s_mul_i32 s{s_b}, s{s_w}, {512*3584}
    s_lshl_b32 s3, s{s_ft}, 7
    s_add_u32 s{s_b}, s{s_b}, s3''')
    wload(sW1, 3584, 32)
    g.stamp(8)
    B1R = 240
    e(f'''s_lshl_b32 s3, s{s_ft}, 7
    s_lshr_b32 s{s_a}, s{s_w}, 1
    s_lshl_b32 s{s_a}, s{s_a}, 6
    s_add_u32 s{s_a}, s{s_a}, s3
    v_lshrrev_b32 v{vT1}, 5, v{vL}
    v_lshlrev_b32 v{vT1}, 3, v{vT1}''')
    for q in range(4):
        e.vmem(f'buffer_load_dwordx2 {vr(B1R+2*q,2)}, v{vT1}, {g.srd(sB1)}, s{s_a} offen offset:{16*q}', 'b1')
    g.passofs(s_e, HT, HT_SZ)
    e(f'''s_lshl_b32 s3, s{s_dt}, 18
    s_add_u32 s{s_e}, s{s_e}, s3
    s_lshl_b32 s3, s{s_w}, 16
    s_add_u32 s{s_e}, s{s_e}, s3''')
    biggemm(32, False)
    g.stamp(9)
    e('s_barrier')
    g.reduce4([ACC, ACC+16, ACC+32, ACC+48])
    T = STR
    for r in range(0, 16, 2):
        p = B1R + r//2
        e(f'v_lshlrev_b32 v{vT0}, 16, v{p}\n v_and_b32 v{vT1}, 0xffff0000, v{p}')
        u = vr(ACC+r, 2); t = vr(T, 2)
        e(f'''v_pk_add_f32 {u}, {u}, {vr(vT0,2)}
        v_pk_mul_f32 {t}, {u}, {u}
        v_pk_mul_f32 {t}, {t}, s[{s_c1}:{s_c1+1}]
        v_pk_add_f32 {t}, {t}, s[{s_c0}:{s_c0+1}]
        v_pk_mul_f32 {t}, {t}, {u}
        v_exp_f32 v{T}, v{T}
        v_exp_f32 v{T+1}, v{T+1}
        v_pk_add_f32 {t}, {t}, s[{s_one}:{s_one+1}]
        v_rcp_f32 v{T}, v{T}
        v_rcp_f32 v{T+1}, v{T+1}
        v_pk_mul_f32 {u}, {u}, {t}
        v_cvt_pk_bf16_f32 v{T+8+r//2}, v{ACC+r}, v{ACC+r+1}''')
    g.passofs(s_e, U_, U_SZ)
    e(f'''s_mul_i32 s3, s{s_dt}, {112*2048}
    s_add_u32 s{s_f}, s{s_e}, s3
    s_lshl_b32 s3, s{s_ft}, 13
    s_add_u32 s{s_f}, s{s_f}, s3
    s_lshr_b32 s3, s{s_w}, 1
    s_lshl_b32 s3, s3, 12
    s_add_u32 s{s_f}, s{s_f}, s3
    s_and_b32 s3, s{s_w}, 1
    s_lshl_b32 s3, s3, 10
    s_add_u32 s{s_f}, s{s_f}, s3''')
    e.vmem(f'buffer_store_dwordx4 {vr(T+8,4)}, v{vL16}, {g.srd(sWS)}, s{s_f} offen sc0 sc1')
    e.vmem(f'buffer_store_dwordx4 {vr(T+12,4)}, v{vL16}, {g.srd(sWS)}, s{s_f} offen offset:2048 sc0 sc1')
    g.stamp(10)
    e.label('L_p4'); e('s_nop 7')
    g.dma_voff(4096)
    e(f'''s_mul_i32 s{s_b}, s{s_w}, {448*4096}
    s_lshl_b32 s3, s{s_tt}, 7
    s_add_u32 s{s_b}, s{s_b}, s3''')
    wload(sW2, 4096, 28)
    g.stamp(11)
    g.passofs(s_e, U_, U_SZ)
    e(f'''s_mul_i32 s3, s{s_ct}, {112*2048}
    s_add_u32 s{s_e}, s{s_e}, s3
    s_mul_i32 s3, s{s_w}, {28*2048}
    s_add_u32 s{s_e}, s{s_e}, s3''')
    biggemm(28, True)
    g.stamp(12)
    e('s_barrier')
    g.reduce4([ACC, ACC+16, ACC+32, ACC+48])
    e(f'v_mov_b32 v{vT0}, v{vB2}')
    for r in range(0, 16, 2):
        e(f'v_pk_add_f32 {vr(ACC+r,2)}, {vr(ACC+r,2)}, {vr(vT0,2)} op_sel_hi:[1,0]')
        e(f'v_pk_add_f32 {vr(vRES+r,2)}, {vr(vRES+r,2)}, {vr(ACC+r,2)}')
        e(f'v_cvt_pk_bf16_f32 v{STR+32+r//2}, v{vRES+r}, v{vRES+r+1}')
    e(f's_cmp_lg_u32 s{s_pass}, 0\n s_cbranch_scc1 L_final')
    e(f'''s_mul_i32 s{s_f}, s{s_tbo}, {28*1024}
    s_lshl_b32 s3, s{s_cbo}, 11
    s_add_u32 s{s_f}, s{s_f}, s3
    s_add_u32 s{s_f}, s{s_f}, {X2}''')
    e.vmem(f'buffer_store_dwordx4 {vr(STR+32,4)}, v{vL16}, {g.srd(sWS)}, s{s_f} offen sc0 sc1')
    e.vmem(f'buffer_store_dwordx4 {vr(STR+36,4)}, v{vL16}, {g.srd(sWS)}, s{s_f} offen offset:1024 sc0 sc1')
    stats_publish(SX, False)
    g.stamp(13)
    e.label('L_passend')
    e(f's_cmp_lg_u32 s{s_pass}, 0\n s_cbranch_scc1 L_done')
    e(f'''s_mov_b32 s{s_pass}, 1
    s_mov_b64 s[{s_cmask}:{s_cmask+1}], -1
    s_mov_b32 s{sXC}, s{sWS}
    s_mov_b32 s{sXC+1}, s{sWS+1}
    s_mov_b32 s{sXC+2}, {64*MB}
    s_lshl_b32 s3, s{s_t}, 2
    s_add_u32 s3, s3, s{s_w}
    s_mul_i32 s{s_xbase}, s3, {28*1024}
    s_add_u32 s{s_xbase}, s{s_xbase}, {X2}
    s_mov_b32 s{s_xstep}, 1024
    v_mov_b32 v{vXOFF}, v{vL16}
    v_subrev_u32 v{vWA0}, s{s_stg}, v{vTR}
    s_and_b32 s3, s{s_h}, 1
    s_lshl_b32 s3, s3, 3
    v_add_u32 v{vWA0}, s3, v{vWA0}
    v_add_u32 v{vWA1}, 512, v{vWA0}
    v_add_u32 v{vWQ0}, 57344, v{vWA0}
    v_add_u32 v{vWQ1}, 57344, v{vWA1}
    s_waitcnt lgkmcnt(0)
    s_barrier
    s_branch L_pass''')
    e.label('L_final')
    P = STR+32
    e(f'''s_nop 1
    v_permlane32_swap_b32 v{P}, v{P+2}
    v_permlane32_swap_b32 v{P+1}, v{P+3}
    v_permlane32_swap_b32 v{P+4}, v{P+6}
    v_permlane32_swap_b32 v{P+5}, v{P+7}
    s_mul_i32 s{s_a}, s{s_tbo}, {32*896}
    s_lshl_b32 s3, s{s_cbo}, 6
    s_add_u32 s{s_a}, s{s_a}, s3
    v_and_b32 v{vT1}, 31, v{vL}
    v_lshrrev_b32 v{vT0}, 5, v{vL}
    v_mul_u32_u24 v{vT2}, 896, v{vT1}
    v_lshl_add_u32 v{vT2}, v{vT0}, 4, v{vT2}
    buffer_store_dwordx4 {vr(P,4)}, v{vT2}, {g.srd(sOUT)}, s{s_a} offen
    buffer_store_dwordx4 {vr(P+4,4)}, v{vT2}, {g.srd(sOUT)}, s{s_a} offen offset:32''')
    g.stamp(13)
    e.label('L_done')
    if stamps:
        e(f'''s_lshl_b32 s3, s2, 2
        s_add_u32 s3, s3, s{s_w}
        s_lshl_b32 s3, s3, 8
        s_add_u32 s3, s3, {STAMP}
        v_lshlrev_b32 v{vT2}, 2, v{vL}
        v_mov_b32 v{vT0}, 0''')
        for i in range(14): e(f'v_writelane_b32 v{vT0}, s{88+i}, {i}')
        e(f'v_writelane_b32 v{vT0}, s{s_retry}, 63')
        e(f'buffer_store_dword v{vT0}, v{vT2}, {g.srd(sWS)}, s3 offen')
    e.label('L_end')
    e('s_endpgm')
    e.L += g.stubs
    body, nn = e.finish()
    hdr = open('cdna_kernels/' + NAME + '.s.ref').read().split('; Override')[0]
    txt = hdr + '; @launch grid=(256,1,1) block=(256,1,1) lds=163840\n'
    txt += f'.amdgcn_target "amdgcn-amd-amdhsa--gfx950"\n.text\n.globl {g.name}\n.p2align 8\n.type {g.name},@function\n{g.name}:\n'
    txt += '\n'.join(body) + '\n'
    txt += f'''.section .rodata,"a"
.p2align 6
.amdhsa_kernel {g.name}
  .amdhsa_next_free_vgpr 512
  .amdhsa_next_free_sgpr 102
  .amdhsa_accum_offset 256
  .amdhsa_group_segment_fixed_size 0
  .amdhsa_kernarg_size 88
  .amdhsa_user_sgpr_count 2
  .amdhsa_user_sgpr_kernarg_segment_ptr 1
  .amdhsa_system_sgpr_workgroup_id_x 1
.end_amdhsa_kernel
'''
    return txt, nn

if __name__ == '__main__':
    out = sys.argv[1]; st = len(sys.argv) > 2 and sys.argv[2] == 'stamps'
    txt, nn = gen(st)
    open(out, 'w').write(txt)
    print('written', out, 'lines', txt.count('\n'), 'nops inserted', nn)
```
